```python
import torch

def _softmax(x, axis=-1):
    return torch.softmax(x, dim=axis)

def _gelu(x):
    return torch.nn.functional.gelu(x, approximate='tanh')

def _silu(x):
    return torch.nn.functional.silu(x)

def _sigmoid(x):
    return torch.sigmoid(x)

def _layernorm(x, axis=-1, eps=1e-05):
    m = x.mean(dim=axis, keepdim=True)
    v = x.var(dim=axis, keepdim=True, unbiased=False)
    return (x - m) / torch.sqrt(v + eps)

def _scatter_add(tgt, idx, src, axis=0):
    return tgt.clone().index_add_(axis, idx, src)

def _segment_sum(src, seg, n):
    out = torch.zeros((n,) + src.shape[1:], dtype=src.dtype)
    return out.index_add_(0, seg, src)

def _pad(x, pw):
    flat = tuple((v for pair in reversed(pw) for v in pair))
    return torch.nn.functional.pad(x, flat)
kernel_name = 'adaLN_cond__compressed_kv_cla__glu_gated_swiglu__prompt'

def setup_inputs():

    _w = lambda a: (lambda t: t.to(torch.bfloat16) if t.is_floating_point() else t)(torch.as_tensor(a))

    def _A_setup():
        B, H, Sq, Sk, D, M = (1, 32, 2048, 2048, 128, 512)
        Dc = 4 * D
        return {'x': _w((lambda *s: torch.randn(*s, dtype=torch.bfloat16) * 0.05)(B, Sq, M)), 'c_kv': _w((lambda *s: torch.randn(*s, dtype=torch.bfloat16) * 0.8)(B, Sk, Dc)), 'w_q': _w((lambda *s: torch.randn(*s, dtype=torch.bfloat16) * 1.6)(M, H, D) * M ** (-0.5)), 'w_uk': _w((lambda *s: torch.randn(*s, dtype=torch.bfloat16) * 1.6)(Dc, H, D) * Dc ** (-0.5)), 'w_uv': _w((lambda *s: torch.randn(*s, dtype=torch.bfloat16) * 0.8)(Dc, H, D) * Dc ** (-0.5)), 'w_o': _w((lambda *s: torch.randn(*s, dtype=torch.bfloat16) * 0.8)(H, D, M) * (H * D) ** (-0.5))}
    _A_in = _A_setup()

    def _B_setup():
        B, S, D, F = (1, 2048, 512, 1792)
        return {'x': _w((lambda *s: torch.randn(*s, dtype=torch.bfloat16) * 0.05)(B, S, D)), 'w1': _w((lambda *s: torch.randn(*s, dtype=torch.bfloat16) * 0.4)(D, F) * (2.0 / D) ** 0.5), 'w3': _w((lambda *s: torch.randn(*s, dtype=torch.bfloat16) * 0.4)(D, F) * (2.0 / D) ** 0.5), 'w2': _w((lambda *s: torch.randn(*s, dtype=torch.bfloat16) * 0.4)(F, D) * (2.0 / F) ** 0.5)}
    _B_in = _B_setup()
    return {'A_x': _A_in['x'], 'A_c_kv': _A_in['c_kv'], 'A_w_q': _A_in['w_q'], 'A_w_uk': _A_in['w_uk'], 'A_w_uv': _A_in['w_uv'], 'A_w_o': _A_in['w_o'], 'B_x': _B_in['x'], 'B_w1': _B_in['w1'], 'B_w3': _B_in['w3'], 'B_w2': _B_in['w2'], 'c': _w((lambda *s: torch.randn(*s, dtype=torch.bfloat16) * 0.1)(1, 512) * 8.0), 'w_mod': _w((lambda *s: torch.randn(*s, dtype=torch.bfloat16) * 0.1)(512, 6 * 512) * 512 ** (-0.5) * 8.0)}

def reference(A_x, A_c_kv, A_w_q, A_w_uk, A_w_uv, A_w_o, B_x, B_w1, B_w3, B_w2, c, w_mod):

    def _A_ref(x, c_kv, w_q, w_uk, w_uv, w_o):
        B, Sq, M = (x.shape[0], x.shape[1], x.shape[2])
        Sk = c_kv.shape[1]
        H, D = (w_q.shape[1], w_q.shape[2])
        q = torch.einsum('bqm,mhd->bhqd', x, w_q)
        k = torch.einsum('bkc,chd->bhkd', c_kv, w_uk)
        v = torch.einsum('bkc,chd->bhkd', c_kv, w_uv)
        scores = torch.einsum('bhqd,bhkd->bhqk', q, k) * D ** (-0.5)
        off = Sk - Sq
        qi = torch.arange(Sq)[:, None]
        kj = torch.arange(Sk)[None, :]
        cmask = kj <= qi + off
        scores = torch.where(cmask[None, None], scores, -1000000000.0)
        p = _softmax(scores, axis=-1)
        ctx = torch.einsum('bhqk,bhkd->bhqd', p, v)
        return torch.einsum('bhqd,hdm->bqm', ctx, w_o)

    def _B_ref(x, w1, w3, w2):
        gate = torch.einsum('bsd,df->bsf', x, w1)
        up = torch.einsum('bsd,df->bsf', x, w3)
        h = _silu(gate) * up
        out = torch.einsum('bsf,fd->bsd', h, w2)
        return out
    x = A_x
    mod = (_silu(c) @ w_mod).reshape(c.shape[0], 6, 1, -1)
    sa, ca, ga, sb, cb, gb = (mod[:, 0].clone(), mod[:, 1].clone(), mod[:, 2].clone(), mod[:, 3].clone(), mod[:, 4].clone(), mod[:, 5].clone())
    h = _layernorm(x, axis=-1) * (1 + ca) + sa
    x = x + ga * _A_ref(h, A_c_kv, A_w_q, A_w_uk, A_w_uv, A_w_o)
    h = _layernorm(x, axis=-1) * (1 + cb) + sb
    x = x + gb * _B_ref(h, B_w1, B_w3, B_w2)
    return x
```

```python
import re

_REG = re.compile(r'^(-|abs\()?\|?([vsa])(\d+)\|?\)?$')
_RNG = re.compile(r'^(-|abs\()?\|?([vsa])\[(\d+):(\d+)\]\|?\)?$')

def regs_of(tok):
    tok = tok.strip()
    m = _REG.match(tok)
    if m: return [m.group(2) + m.group(3)]
    m = _RNG.match(tok)
    if m: return [m.group(2) + str(i) for i in range(int(m.group(3)), int(m.group(4)) + 1)]
    if tok in ('vcc',): return ['vcc']
    if tok in ('vcc_lo', 'vcc_hi'): return ['vcc']
    if tok in ('exec', 'exec_lo', 'exec_hi'): return ['exec']
    if tok == 'm0': return ['m0']
    return []

TRANS = ('v_exp_f32', 'v_log_f32', 'v_rcp_f32', 'v_rsq_f32', 'v_sqrt_f32', 'v_sin_f32', 'v_cos_f32', 'v_rcp_iflag_f32')

class Ins:
    __slots__ = ('text', 'mn', 'kind', 'rd', 'wr', 'passes', 'trans', 'dpp', 'perm', 'rl', 'srcc', 'srcab', 'wide',
                 'data', 'nop', 'target', 'cond', 'lds', 'vm', 'lgkm', 'sdwa', 'comment', 'tag')
    def __init__(self, text, tag=None):
        self.tag = tag
        t = text.split(';')[0].strip()
        self.text = text
        parts = t.split(None, 1)
        mn = parts[0]; self.mn = mn
        rest = parts[1] if len(parts) > 1 else ''
        ops = []; depth = 0; cur = ''
        for ch in rest:
            if ch in '[(': depth += 1
            if ch in '])': depth -= 1
            if ch == ',' and depth == 0:
                ops.append(cur.strip()); cur = ''
            else: cur += ch
        if cur.strip(): ops.append(cur.strip())
        mods = ''
        if ops:
            last = ops[-1].split(None, 1)
            if len(last) > 1 and not last[0].endswith('('):
                ops[-1] = last[0]; mods = last[1]
        self.rd = []; self.wr = []; self.passes = 0; self.trans = False; self.dpp = False; self.perm = False
        self.rl = False; self.srcc = []; self.srcab = []; self.wide = False; self.data = []; self.nop = 1
        self.target = None; self.cond = False; self.lds = False; self.vm = None; self.lgkm = None; self.sdwa = False
        R = lambda i: regs_of(ops[i]) if i < len(ops) else []
        allr = lambda a: [r for o in ops[a:] for r in regs_of(o)]
        if mn.startswith('v_mfma'):
            self.kind = 'mfma'
            self.passes = 8 if '32x32x16' in mn else 4 if '16x16x32' in mn else None
            assert self.passes, mn
            self.wr = R(0); self.srcab = R(1) + R(2); self.srcc = R(3); self.rd = self.srcab + self.srcc
        elif mn.startswith('v_'):
            self.kind = 'valu'
            base = mn.replace('_e32', '').replace('_e64', '').replace('_dpp', '').replace('_sdwa', '')
            self.trans = base in TRANS
            self.dpp = '_dpp' in mn or 'row_' in mods or 'quad_perm' in mods
            self.sdwa = '_sdwa' in mn
            if base.startswith('v_permlane'):
                self.perm = True; self.wr = R(0) + R(1); self.rd = R(0) + R(1)
            elif base in ('v_readfirstlane_b32', 'v_readlane_b32'):
                self.rl = True; self.wr = R(0); self.rd = allr(1)
            elif base.startswith(('v_add_co', 'v_sub_co', 'v_addc_co', 'v_subb_co', 'v_subrev_co', 'v_mad_u64_u32')):
                self.wr = R(0) + R(1); self.rd = allr(2)
            elif base == 'v_nop':
                pass
            else:
                self.wr = R(0); self.rd = allr(1)
                if base.startswith(('v_fmac', 'v_dot2c', 'v_pk_fmac', 'v_writelane')) or self.dpp or self.sdwa:
                    self.rd = self.rd + R(0)
                if base.startswith('v_cmpx'): raise ValueError('avoid v_cmpx')
            self.rd = self.rd + ['exec']
        elif mn.startswith('ds_read') or mn.startswith('ds_bpermute') or mn.startswith('ds_swizzle') or mn.startswith('ds_permute'):
            self.kind = 'dsr'; self.wr = R(0); self.rd = allr(1)
        elif mn.startswith('ds_write'):
            self.kind = 'dsw'; self.rd = allr(0)
        elif mn.startswith('ds_add') :
            self.kind = 'dsr' if 'rtn' in mn else 'dsw'
            if 'rtn' in mn: self.wr = R(0); self.rd = allr(1)
            else: self.rd = allr(0)
        elif mn.startswith('buffer_load') or mn.startswith('global_load'):
            if ' lds' in (' ' + mods) or '_lds_' in mn:
                self.kind = 'dma'; self.lds = True; self.rd = allr(0) + ['m0']
            else:
                self.kind = 'vld'; self.wr = R(0); self.rd = allr(1)
        elif mn.startswith('buffer_store'):
            self.kind = 'vst'; self.rd = allr(0); self.data = R(0); self.wide = 'x3' in mn or 'x4' in mn
        elif mn.startswith('global_store'):
            self.kind = 'vst'; self.rd = allr(0); self.data = R(1); self.wide = 'x3' in mn or 'x4' in mn
        elif mn.startswith('buffer_atomic'):
            self.kind = 'vld' if 'sc0' in mods else 'vst'
            self.rd = allr(0)
            if 'sc0' in mods: self.wr = R(0)
        elif mn in ('buffer_wbl2', 'buffer_inv'):
            self.kind = 'vst'
        elif mn == 's_waitcnt':
            self.kind = 'wait'
            m = re.search(r'vmcnt\((\d+)\)', t); self.vm = int(m.group(1)) if m else None
            m = re.search(r'lgkmcnt\((\d+)\)', t); self.lgkm = int(m.group(1)) if m else None
            assert self.vm is None or self.vm <= 63, t
            assert self.lgkm is None or self.lgkm <= 15, t
        elif mn == 's_nop':
            self.kind = 'nop'; self.nop = int(ops[0], 0) + 1
        elif mn.startswith('s_cbranch') or mn == 's_branch':
            self.kind = 'br'; self.target = ops[0]; self.cond = mn != 's_branch'
        elif mn == 's_endpgm':
            self.kind = 'end'
        elif mn.startswith('s_load') or mn.startswith('s_buffer_load') or mn in ('s_memtime', 's_memrealtime'):
            self.kind = 'smem'; self.wr = R(0); self.rd = allr(1)
        elif mn.startswith('s_'):
            self.kind = 'salu'
            if mn.startswith(('s_cmp', 's_bitcmp', 's_barrier', 's_setprio', 's_sleep')):
                self.rd = allr(0)
            else:
                self.wr = R(0); self.rd = allr(1)
                if 'saveexec' in mn: self.wr = self.wr + ['exec']
                if mn in ('s_addk_i32', 's_mulk_i32'): self.rd = self.rd + R(0)
        else:
            raise ValueError('unknown instruction: ' + text)

class Label:
    def __init__(self, name): self.name = name
class Raw:
    def __init__(self, text): self.text = text

def need(p, c):
    n = 0
    pw = set(p.wr)
    if p.kind == 'valu':
        vw = {r for r in pw if r[0] in 'va' and r != 'vcc'}
        sw = {r for r in pw if r[0] == 's' or r == 'vcc'}
        if c.kind == 'mfma' and vw & set(c.rd): n = max(n, 2)
        if c.kind == 'valu':
            crd = set(c.rd)
            if p.trans and not c.trans and vw & crd: n = max(n, 1)
            if p.trans and c.trans and vw & crd: n = max(n, 1)
            if p.sdwa and vw & (crd | set(c.wr)): n = max(n, 1)
            if c.rl and vw & crd: n = max(n, 1)
            if (c.dpp or c.perm) and vw & crd: n = max(n, 2)
            if sw & crd: n = max(n, 4 if c.rl else 2)
        if c.kind in ('vld', 'vst', 'dma') and sw & set(c.rd): n = max(n, 5)
        if c.kind in ('salu', 'br', 'smem') and sw & set(c.rd): n = max(n, 1)
    if p.kind == 'mfma':
        big = 12 if p.passes == 8 else 8
        if c.kind == 'mfma':
            if pw & set(c.srcab): n = max(n, big)
            if pw & set(c.srcc):
                if not (c.srcc == p.wr and c.passes == p.passes): n = max(n, big - 2)
            elif pw & set(c.wr): n = max(n, big - 2)
        elif c.kind in ('valu', 'dsr', 'dsw', 'vld', 'vst', 'dma'):
            if pw & (set(c.rd) | set(c.wr)): n = max(n, big)
        if c.kind == 'valu' and set(p.srcc) & set(c.wr): n = max(n, 7 if p.passes == 8 else 3)
        if c.kind in ('dsr', 'vld') and set(p.srcc) & set(c.wr): n = max(n, 7 if p.passes == 8 else 3)
    if p.kind == 'salu' and 'm0' in pw and c.kind == 'dma': n = max(n, 1)
    if p.kind == 'vst' and p.wide and set(p.data) & set(c.wr): n = max(n, 2 if c.kind == 'valu' else 1)
    return n

class Prog:
    def __init__(self):
        self.items = []
        self.uid = 0
    def I(self, text, tag=None):
        for ln in text.strip().split('\n'):
            ln = ln.strip()
            if not ln or ln.startswith(';'):
                continue
            if ln.endswith(':'):
                self.items.append(Label(ln[:-1])); continue
            self.items.append(Ins(ln, tag))
    def L(self, name): self.items.append(Label(name))
    def raw(self, text): self.items.append(Raw(text))
    def newlabel(self, p='L'):
        self.uid += 1
        return f'{p}_{self.uid}'

    def fix_hazards(self):
        out = []
        hist = []
        def req(hist, c):
            dist = 0; worst = 0
            for p in reversed(hist):
                n = need(p, c)
                if n > dist: worst = max(worst, n - dist)
                dist += p.nop
                if dist >= 13: break
            return worst
        for it in self.items:
            if isinstance(it, Ins):
                w = req(hist, it)
                if w > 0:
                    nop = Ins(f's_nop {w - 1}', 'auto')
                    out.append(nop); hist.append(nop)
                out.append(it); hist.append(it)
                if it.kind == 'end' or (it.kind == 'br' and not it.cond): hist = []
                hist = hist[-16:]
            else:
                if isinstance(it, Raw): hist = [] if 'p2align 8' in it.text else hist
                out.append(it)
        self.items = out
        pos = {it.name: i for i, it in enumerate(out) if isinstance(it, Label)}
        for i, it in enumerate(out):
            if isinstance(it, Ins) and it.kind == 'br':
                h = []
                j = i
                while j >= 0 and len(h) < 16:
                    x = out[j]
                    if isinstance(x, Ins):
                        if x is not it and (x.kind == 'end' or (x.kind == 'br' and not x.cond)): break
                        h.append(x)
                    j -= 1
                h.reverse()
                j = pos[it.target]; cnt = 0
                while j < len(out) and cnt < 14:
                    x = out[j]
                    if isinstance(x, Ins):
                        w = req(h, x)
                        if w > 0:
                            raise ValueError(f'hazard on taken branch {it.text} -> {x.text}: need {w} more states')
                        h.append(x); cnt += x.nop
                        if x.kind == 'end' or (x.kind == 'br' and not x.cond): break
                    j += 1

    def check_waits(self, start_label, taken=()):
        items = self.items
        pos = {it.name: i for i, it in enumerate(items) if isinstance(it, Label)}
        i = pos[start_label]
        vm = []; lg = []
        seen_back = {}
        steps = 0
        fwd = []
        while i < len(items):
            it = items[i]; i += 1
            if not isinstance(it, Ins): continue
            steps += 1
            if steps > 400000: raise ValueError('check_waits: too many steps')
            touched = set(it.rd) | set(it.wr)
            for q, nm in ((vm, 'vm'), (lg, 'lgkm')):
                for (src, regs) in q:
                    if regs & touched:
                        raise ValueError(f'{nm} scoreboard: "{it.text}" touches {sorted(regs & touched)} pending from "{src.text}"')
            if it.kind == 'wait':
                if it.vm is not None: vm = vm[max(0, len(vm) - it.vm):] if it.vm else []
                if it.lgkm is not None:
                    if any(s.kind == 'smem' for s, _ in lg) and it.lgkm != 0:
                        pass
                    else:
                        lg = lg[max(0, len(lg) - it.lgkm):] if it.lgkm else []
            elif it.kind in ('vld', 'vst', 'dma'):
                vm.append((it, set(it.wr)))
                if len(vm) > 63: raise ValueError('vmcnt overflow at ' + it.text)
            elif it.kind in ('dsr', 'dsw', 'smem'):
                lg.append((it, set(it.wr)))
            elif it.kind == 'end':
                break
            elif it.kind == 'br':
                t = pos[it.target]
                if not it.cond:
                    if t < i:
                        seen_back[i] = seen_back.get(i, 0) + 1
                        if seen_back[i] > 2: break
                    i = t
                elif t < i:
                    if seen_back.get(i, 0) < 1:
                        seen_back[i] = seen_back.get(i, 0) + 1; i = t
                else:
                    fwd.append(i)
                    if i in taken: i = t
        return fwd

    def check_all_waits(self, start_label):
        fwd = self.check_waits(start_label)
        done = set()
        todo = [(f,) for f in dict.fromkeys(fwd)]
        n = 0
        while todo:
            tk = todo.pop()
            if tk in done: continue
            done.add(tk); n += 1
            f2 = self.check_waits(start_label, taken=set(tk))
            if len(tk) < 2:
                for f in dict.fromkeys(f2):
                    if f not in tk and f > tk[-1] and n < 400: todo.append(tk + (f,))

    def text(self):
        o = []
        for it in self.items:
            if isinstance(it, Ins): o.append('  ' + it.text)
            elif isinstance(it, Label): o.append(it.name + ':')
            else: o.append(it.text)
        return '\n'.join(o) + '\n'

def interleave(main, fill, start=0, end=None, weights=None):
    n = len(main)
    if end is None: end = n
    gaps = end - start
    out = []
    k = 0
    for i, m in enumerate(main):
        out.append(m)
        if start <= i < end:
            tgt = (len(fill) * (i - start + 1) + gaps - 1) // gaps
            while k < tgt and k < len(fill):
                out.append(fill[k]); k += 1
    out.extend(fill[k:])
    return out
```

```python
from asmlib import *

WS_MOD  = 0x0000_0000
WS_CF   = 0x0010_0000
WS_H    = 0x0030_0000
WS_H2   = 0x0050_0000
WS_X1   = 0x0070_0000
WS_ACT  = 0x0100_0000
WS_KV   = 0x0200_0000
WS_CTX  = 0x0400_0000
WS_PART = 0x0500_0000

KA = dict(x=0, ckv=8, wq=16, wuk=24, wuv=32, wo=40, bx=48, w1=56, w3=64, w2=72, c=80, wmod=88, out=96, dbg=104, ws=112)

def v(i, n=1): return f'v{i}' if n == 1 else f'v[{i}:{i+n-1}]'
def s(i, n=1): return f's{i}' if n == 1 else f's[{i}:{i+n-1}]'

class VmTrack:
    def __init__(self): self.q = []
    def issue(self, tag): self.q.append(tag)
    def n_for(self, tag):
        idx = max(i for i, t in enumerate(self.q) if t == tag)
        return len(self.q) - 1 - idx

def kernel_begin(p, name, nwg):
    p.raw(f'.globl {name}\n.p2align 8\n.type {name},@function')
    p.L(name)
    p.I(f's_cmp_ge_u32 s2, {nwg}')
    p.I(f's_cbranch_scc1 {name}_end')

def kernel_end(p, name):
    p.L(f'{name}_end')
    p.I('s_endpgm')

def descriptor(name, vgpr, sgpr=102):
    acc = (vgpr + 3) // 4 * 4
    return f'''.p2align 6
.amdhsa_kernel {name}
  .amdhsa_next_free_vgpr {vgpr}
  .amdhsa_next_free_sgpr {sgpr}
  .amdhsa_accum_offset {min(acc,256)}
  .amdhsa_group_segment_fixed_size 0
  .amdhsa_kernarg_size 120
  .amdhsa_user_sgpr_count 2
  .amdhsa_user_sgpr_kernarg_segment_ptr 1
  .amdhsa_system_sgpr_workgroup_id_x 1
  .amdhsa_float_denorm_mode_32 3
.end_amdhsa_kernel
'''

def load_ptr(p, sreg, arg):
    p.I(f's_load_dwordx2 {s(sreg,2)}, s[0:1], {KA[arg]}')

def make_srd(p, d, ptr, size, off=0):
    if off:
        p.I(f's_add_u32 {s(d)}, {s(ptr)}, 0x{off:x}')
        p.I(f's_addc_u32 {s(d+1)}, {s(ptr+1)}, 0')
    else:
        p.I(f's_mov_b32 {s(d)}, {s(ptr)}')
        p.I(f's_mov_b32 {s(d+1)}, {s(ptr+1)}')
    p.I(f's_mov_b32 {s(d+2)}, 0x{size:x}')
    p.I(f's_mov_b32 {s(d+3)}, 0x20000')

def wave_sum_dpp(p, regs):
    for mod in ('row_shr:1 row_mask:0xf', 'row_shr:2 row_mask:0xf', 'row_shr:4 row_mask:0xf', 'row_shr:8 row_mask:0xf',
                'row_bcast:15 row_mask:0xa', 'row_bcast:31 row_mask:0xc'):
        for r in regs:
            p.I(f'v_add_f32_dpp {v(r)}, {v(r)}, {v(r)} {mod} bank_mask:0xf')

def round_bf16_pair(p, a, b, tmp):
    p.I(f'v_cvt_pk_bf16_f32 {v(tmp)}, {v(a)}, {v(b)}')
    p.I(f'v_lshlrev_b32 {v(a)}, 16, {v(tmp)}')
    p.I(f'v_and_b32 {v(b)}, 0xffff0000, {v(tmp)}')

def unpack8(p, src, dst):
    for i in range(4):
        p.I(f'v_lshlrev_b32 {v(dst+2*i)}, 16, {v(src+i)}')
        p.I(f'v_and_b32 {v(dst+2*i+1)}, 0xffff0000, {v(src+i)}')

def layernorm_mod(p, X, SC, SH, T, OUT, sa, sb):
    p.I(f'v_add_f32 {v(T)}, {v(X)}, {v(X+1)}')
    for i in range(2, 8): p.I(f'v_add_f32 {v(T)}, {v(T)}, {v(X+i)}')
    wave_sum_dpp(p, [T])
    p.I(f'v_readlane_b32 {s(sa)}, {v(T)}, 63')
    p.I(f'v_mov_b32 {v(T+1)}, 0x3b000000')
    p.I(f'v_mul_f32 {v(T+1)}, {s(sa)}, {v(T+1)}')
    for i in range(8):
        p.I(f'v_sub_f32 {v(T+2+i)}, {v(X+i)}, {v(T+1)}')
    p.I(f'v_mul_f32 {v(T)}, {v(T+2)}, {v(T+2)}')
    for i in range(1, 8): p.I(f'v_fmac_f32 {v(T)}, {v(T+2+i)}, {v(T+2+i)}')
    wave_sum_dpp(p, [T])
    p.I(f'v_readlane_b32 {s(sb)}, {v(T)}, 63')
    p.I(f'v_mov_b32 {v(T+2)}, 0x3b000000')
    p.I(f'v_mul_f32 {v(T+2)}, {s(sb)}, {v(T+2)}')
    round_bf16_pair(p, T+1, T+2, T)
    p.I(f'v_add_f32 {v(T+2)}, 0x3727c5ac, {v(T+2)}')
    round_bf16_pair(p, T+2, T+3, T)
    p.I(f'v_sqrt_f32 {v(T+2)}, {v(T+2)}')
    round_bf16_pair(p, T+2, T+3, T)
    p.I(f'v_rcp_f32 {v(T+2)}, {v(T+2)}')
    for i in range(8): p.I(f'v_sub_f32 {v(X+i)}, {v(X+i)}, {v(T+1)}')
    for i in range(0, 8, 2): round_bf16_pair(p, X+i, X+i+1, T+3+i//2)
    for i in range(8): p.I(f'v_mul_f32 {v(X+i)}, {v(X+i)}, {v(T+2)}')
    for i in range(0, 8, 2): round_bf16_pair(p, X+i, X+i+1, T+3+i//2)
    for i in range(8): p.I(f'v_mul_f32 {v(X+i)}, {v(X+i)}, {v(SC+i)}')
    for i in range(0, 8, 2): round_bf16_pair(p, X+i, X+i+1, T+3+i//2)
    for i in range(8): p.I(f'v_add_f32 {v(X+i)}, {v(X+i)}, {v(SH+i)}')
    for i in range(4): p.I(f'v_cvt_pk_bf16_f32 {v(OUT+i)}, {v(X+2*i)}, {v(X+2*i+1)}')

def row_frag_offset(p, dst, lane, srow, t0, t1):
    p.I(f's_lshr_b32 {s(t0)}, {s(srow)}, 5')
    p.I(f's_lshl_b32 {s(t0)}, {s(t0)}, 15')
    p.I(f's_and_b32 {s(t1)}, {s(srow)}, 31')
    p.I(f's_lshl_b32 {s(t1)}, {s(t1)}, 4')
    p.I(f's_add_u32 {s(t0)}, {s(t0)}, {s(t1)}')
    p.I(f'v_lshrrev_b32 {v(dst)}, 1, {v(lane)}')
    p.I(f'v_lshlrev_b32 {v(dst)}, 10, {v(dst)}')
    p.I(f'v_and_b32 {v(dst+1)}, 1, {v(lane)}')
    p.I(f'v_lshlrev_b32 {v(dst+1)}, 9, {v(dst+1)}')
    p.I(f'v_add3_u32 {v(dst)}, {v(dst)}, {v(dst+1)}, {s(t0)}')

import os
STAMPS = os.environ.get('STAMPS', '')
WS_DBG = 0x0F00_0000
class Stamper:
    def __init__(self, p, name):
        self.p = p; self.on = name in STAMPS.split(','); self.n = 0
    def stamp(self):
        if not self.on or self.n >= 30: return
        p = self.p
        p.I('s_memtime s[68:69]')
        p.I('s_waitcnt lgkmcnt(0)')
        p.I(f's_mov_b32 {s(70 + self.n)}, s68')
        self.n += 1
    def real(self):
        if not self.on or self.n >= 30: return
        p = self.p
        p.I('s_memrealtime s[68:69]')
        p.I('s_waitcnt lgkmcnt(0)')
        p.I(f's_mov_b32 {s(70 + self.n)}, s68')
        self.n += 1
    def flush(self, wsptr, swave, vt=0):
        if not self.on: return
        p = self.p
        make_srd(p, 64, wsptr, 0x100000, WS_DBG)
        p.I(f's_lshl_b32 s68, s2, 3')
        p.I(f's_add_u32 s68, s68, {s(swave)}')
        p.I(f's_lshl_b32 s68, s68, 7')
        p.I(f'v_mov_b32 {v(vt)}, 0')
        for i in range(self.n):
            p.I(f'v_mov_b32 {v(vt+1)}, {s(70+i)}')
            p.I(f'buffer_store_dword {v(vt+1)}, {v(vt)}, s[64:67], s68 offen offset:{4*i}')
```

```python
from common import *

def gen_k0(p, name='prep_kernel'):
    kernel_begin(p, name, 256)
    load_ptr(p, 4, 'ckv'); load_ptr(p, 6, 'c'); load_ptr(p, 8, 'wmod'); load_ptr(p, 10, 'ws')
    p.I('v_and_b32 v1, 63, v0')
    p.I('v_lshrrev_b32 v2, 6, v0')
    p.I('v_readfirstlane_b32 s3, v2')
    p.I('s_waitcnt lgkmcnt(0)')
    make_srd(p, 12, 4, 0x200000)
    make_srd(p, 16, 6, 1024)
    make_srd(p, 20, 8, 512 * 6144)
    make_srd(p, 24, 10, 0x200000, WS_CF)
    make_srd(p, 28, 10, 3072 * 4, WS_MOD)
    p.I('s_and_b32 s32, s2, 7')
    p.I('s_lshl_b32 s32, s32, 5')
    p.I('s_lshr_b32 s33, s2, 3')
    p.I('s_add_u32 s32, s32, s33')
    p.I('s_mul_i32 s33, s32, 24')
    p.I('v_mul_u32_u24 v3, 6144, v0')
    p.I('v_lshlrev_b32 v4, 1, v0')
    p.I('buffer_load_ushort v10, v4, s[16:19], 0 offen')
    p.I('buffer_load_dwordx2 v[12:13], v3, s[20:23], s33 offen')
    p.I('buffer_load_dwordx2 v[14:15], v3, s[20:23], s33 offen offset:8')
    p.I('buffer_load_dwordx2 v[16:17], v3, s[20:23], s33 offen offset:16')
    p.I('s_lshl_b32 s34, s2, 3')
    p.I('s_add_u32 s34, s34, s3')
    p.I('s_lshl_b32 s35, s34, 10')
    p.I('v_lshlrev_b32 v5, 4, v1')
    p.I('buffer_load_dwordx4 v[20:23], v5, s[12:15], s35 offen')
    row_frag_offset(p, 6, 1, 34, 36, 37)
    p.I('s_waitcnt vmcnt(4)')
    p.I('v_lshlrev_b32 v10, 16, v10')
    p.I('v_mul_f32 v11, 0xbfb8aa3b, v10')
    p.I('v_exp_f32 v11, v11')
    p.I('v_add_f32 v11, 1.0, v11')
    p.I('v_rcp_f32 v11, v11')
    p.I('v_mul_f32 v10, v10, v11')
    p.I('v_cvt_pk_bf16_f32 v10, v10, v10')
    p.I('v_lshlrev_b32 v10, 16, v10')
    p.I('s_waitcnt vmcnt(1)')
    for i in range(6):
        p.I(f'v_lshlrev_b32 {v(24+2*i)}, 16, {v(12+i)}')
        p.I(f'v_and_b32 {v(25+2*i)}, 0xffff0000, {v(12+i)}')
    for i in range(12): p.I(f'v_mul_f32 {v(24+i)}, {v(10)}, {v(24+i)}')
    wave_sum_dpp(p, list(range(24, 36)))
    p.I('s_waitcnt vmcnt(0)')
    p.I('buffer_store_dwordx4 v[20:23], v6, s[24:27], 0 offen')
    p.I('s_lshl_b32 s36, s3, 6')
    p.I('v_mov_b32 v8, s36')
    p.I('s_mov_b64 s[38:39], exec')
    p.I('s_mov_b32 exec_lo, 0')
    p.I('s_mov_b32 exec_hi, 0x80000000')
    p.I('ds_write_b128 v8, v[24:27]')
    p.I('ds_write_b128 v8, v[28:31] offset:16')
    p.I('ds_write_b128 v8, v[32:35] offset:32')
    p.I('s_mov_b64 exec, s[38:39]')
    p.I('s_waitcnt lgkmcnt(0)')
    p.I('s_barrier')
    p.I('s_cmp_lg_u32 s3, 0')
    p.I(f's_cbranch_scc1 {name}_end')
    p.I('v_and_b32 v9, 15, v1')
    p.I('v_lshlrev_b32 v9, 2, v9')
    for w in range(8): p.I(f'ds_read_b32 {v(24+w)}, v9 offset:{64*w}')
    p.I('s_waitcnt lgkmcnt(0)')
    for w in range(1, 8): p.I(f'v_add_f32 v24, v24, {v(24+w)}')
    p.I('v_cvt_pk_bf16_f32 v24, v24, v24')
    p.I('v_lshlrev_b32 v24, 16, v24')
    p.I('v_add_f32 v25, 1.0, v24')
    p.I('v_cvt_pk_bf16_f32 v25, v25, v25')
    p.I('v_lshlrev_b32 v25, 16, v25')
    p.I('s_mul_i32 s36, s32, 12')
    p.I('v_add_u32 v26, s36, v1')
    p.I('v_lshrrev_b32 v27, 9, v26')
    p.I('v_cmp_eq_u32 s[40:41], 1, v27')
    p.I('v_cmp_eq_u32 s[42:43], 4, v27')
    p.I('s_nop 1')
    p.I('s_or_b64 s[40:41], s[40:41], s[42:43]')
    p.I('s_nop 1')
    p.I('v_cndmask_b32 v24, v24, v25, s[40:41]')
    p.I('v_lshlrev_b32 v26, 2, v26')
    p.I('s_mov_b32 exec_lo, 0xfff')
    p.I('s_mov_b32 exec_hi, 0')
    p.I('buffer_store_dword v24, v26, s[28:31], 0 offen')
    kernel_end(p, name)
    return dict(name=name, grid=256, block=512, lds=1024, vgpr=40)
```

```python
from common import *

def tr_addr_128(p, dst, lane, nb, t0, t1, perm):
    p.I(f'v_bfe_u32 {v(t0)}, {v(lane)}, 2, 2')
    p.I(f'v_lshrrev_b32 {v(t1)}, 5, {v(lane)}')
    p.I(f'v_lshlrev_b32 {v(t1)}, {2 if perm else 3}, {v(t1)}')
    p.I(f'v_add_u32 {v(t1)}, {v(t1)}, {v(t0)}')
    p.I(f'v_lshlrev_b32 {v(dst)}, 7, {v(t1)}')
    p.I(f'v_lshrrev_b32 {v(t0)}, 1, {v(t0)}')
    p.I(f'v_xor_b32 {v(t0)}, {nb}, {v(t0)}')
    p.I(f'v_lshl_add_u32 {v(dst)}, {v(t0)}, 6, {v(dst)}')
    p.I(f'v_bfe_u32 {v(t0)}, {v(lane)}, 4, 1')
    p.I(f'v_lshl_add_u32 {v(dst)}, {v(t0)}, 5, {v(dst)}')
    p.I(f'v_and_b32 {v(t0)}, 3, {v(lane)}')
    p.I(f'v_lshl_add_u32 {v(dst)}, {v(t0)}, 3, {v(dst)}')

def dma_src_128(p, dst, lane, stride, t0, t1):
    p.I(f'v_lshrrev_b32 {v(t0)}, 3, {v(lane)}')
    p.I(f'v_mul_u32_u24 {v(dst)}, {stride}, {v(t0)}')
    p.I(f'v_bfe_u32 {v(t0)}, {v(lane)}, 4, 1')
    p.I(f'v_lshlrev_b32 {v(t0)}, 2, {v(t0)}')
    p.I(f'v_and_b32 {v(t1)}, 7, {v(lane)}')
    p.I(f'v_xor_b32 {v(t0)}, {v(t0)}, {v(t1)}')
    p.I(f'v_lshl_add_u32 {v(dst)}, {v(t0)}, 4, {v(dst)}')

def gen_k1(p, name='kvproj_kernel'):
    CF = 128; ACC = 64; WF = 32; CV = 16
    kernel_begin(p, name, 256)
    st = Stamper(p, name); st.real(); st.stamp()
    load_ptr(p, 4, 'wuk'); load_ptr(p, 6, 'wuv'); load_ptr(p, 8, 'x'); load_ptr(p, 10, 'ws')
    p.I('v_and_b32 v1, 63, v0')
    p.I('v_lshrrev_b32 v2, 6, v0')
    p.I('v_readfirstlane_b32 s3, v2')
    p.I('v_lshlrev_b32 v2, 4, v1')
    p.I('s_and_b32 s40, s2, 7')
    p.I('s_lshr_b32 s41, s2, 3')
    p.I('s_and_b32 s42, s40, 1')
    p.I('s_lshl_b32 s42, s42, 2')
    p.I('s_and_b32 s43, s41, 3')
    p.I('s_add_u32 s42, s42, s43')
    p.I('s_lshr_b32 s43, s40, 1')
    p.I('s_lshl_b32 s43, s43, 3')
    p.I('s_lshr_b32 s44, s41, 2')
    p.I('s_add_u32 s43, s43, s44')
    p.I('s_lshl_b32 s44, s42, 3')
    p.I('s_add_u32 s44, s44, s3')
    p.I('s_waitcnt lgkmcnt(0)')
    make_srd(p, 12, 4, 0x400000)
    make_srd(p, 16, 6, 0x400000)
    make_srd(p, 20, 8, 0x200000)
    make_srd(p, 24, 10, 0x200000, WS_CF)
    make_srd(p, 28, 10, 3072 * 4, WS_MOD)
    make_srd(p, 32, 10, 0x200000, WS_H)
    make_srd(p, 36, 10, 0x2000000, WS_KV)
    vm = VmTrack()
    p.I('s_lshl_b32 s45, s2, 3')
    p.I('s_add_u32 s45, s45, s3')
    p.I('s_lshl_b32 s46, s45, 10')
    p.I('v_lshlrev_b32 v3, 5, v1')
    LX = 64; LSC = 72; LSH = 80; LT = 88; LR = 100; LO = 104
    p.I(f'buffer_load_dwordx4 {v(LR,4)}, v2, s[20:23], s46 offen'); vm.issue('ln')
    p.I(f'buffer_load_dwordx4 {v(LSH,4)}, v3, s[28:31], 0 offen'); vm.issue('ln')
    p.I(f'buffer_load_dwordx4 {v(LSH+4,4)}, v3, s[28:31], 0 offen offset:16'); vm.issue('ln')
    p.I(f'buffer_load_dwordx4 {v(LSC,4)}, v3, s[28:31], 0 offen offset:2048'); vm.issue('ln')
    p.I(f'buffer_load_dwordx4 {v(LSC+4,4)}, v3, s[28:31], 0 offen offset:2064'); vm.issue('ln')
    dma_src_128(p, 4, 1, 8192, 5, 6)
    p.I('s_lshl_b32 s47, s3, 18')
    p.I('s_lshl_b32 s48, s43, 8')
    p.I('s_add_u32 s47, s47, s48')
    p.I('s_lshl_b32 s48, s3, 12')
    def dma_chunk(c):
        L = []
        pr, kh = c // 2, c % 2
        srd = 's[12:15]' if pr < 2 else 's[16:19]'
        for j in range(4):
            L.append(f's_add_u32 m0, s48, {(c % 5) * 32768 + j * 1024}')
            L.append(f's_add_u32 s49, s47, {(kh * 256 + 8 * j) * 8192 + (pr % 2) * 128}')
            L.append(f'buffer_load_dwordx4 v4, {srd}, s49 offen lds')
        return L
    def emit(L, tag=None):
        for x in L:
            p.I(x)
            if x.startswith('buffer_'): vm.issue(tag)
    def a_loads(t0, t1):
        for t in range(t0, t1):
            if t % 4 == 0:
                p.I(f's_add_u32 s51, s50, {t * 1024}')
            p.I(f'buffer_load_dwordx4 {v(CF + 4 * t, 4)}, v2, s[24:27], s51 offen offset:{(t % 4) * 1024}')
            vm.issue(('a', t // 4))
    p.I('s_lshl_b32 s50, s44, 15')
    emit(dma_chunk(0), ('w', 0))
    a_loads(0, 16)
    emit(dma_chunk(1), ('w', 1))
    a_loads(16, 32)
    for c in (2, 3, 4): emit(dma_chunk(c), ('w', c))
    tr_addr_128(p, 8, 1, 0, 5, 6, False)
    tr_addr_128(p, 9, 1, 1, 5, 6, False)
    p.I('v_add_u32 v10, 0x10000, v8'); p.I('v_add_u32 v11, 0x10000, v9')
    p.I('v_add_u32 v12, 0x20000, v8'); p.I('v_add_u32 v13, 0x20000, v9')
    p.I('s_lshl_b32 s52, s43, 20')
    p.I('s_lshr_b32 s53, s44, 1')
    p.I('s_lshl_b32 s53, s53, 15')
    p.I('s_add_u32 s52, s52, s53')
    p.I('s_and_b32 s53, s44, 1')
    p.I('s_lshl_b32 s53, s53, 13')
    p.I('s_add_u32 s52, s52, s53')
    st.stamp()
    row_frag_offset(p, 14, 1, 45, 54, 55)
    p.I(f's_waitcnt vmcnt({vm.n_for("ln")})')
    unpack8(p, LR, LX)
    layernorm_mod(p, LX, LSC, LSH, LT, LO, 54, 55)
    p.I(f'buffer_store_dwordx4 {v(LO,4)}, v14, s[32:35], 0 offen'); vm.issue('st')

    def reads(sidx):
        c, tl = sidx // 16, sidx % 16
        slot = c % 5
        base = slot * 32768 + tl * 2048
        L = []
        for nb in range(2):
            a = 8 + 2 * (base // 65536) + nb
            for u in range(2):
                L.append(f'ds_read_b64_tr_b16 {v(WF + ((sidx % 4) * 2 + nb) * 4 + 2 * u, 2)}, {v(a)} offset:{base % 65536 + u * 512}')
        return L
    def mfmas(sidx):
        c, tl = sidx // 16, sidx % 16
        pr, kh = c // 2, c % 2
        t = kh * 16 + tl
        L = []
        for nb in range(2):
            acc = v(ACC + (pr % 2) * 32 + nb * 16, 16)
            wf = v(WF + ((sidx % 4) * 2 + nb) * 4, 4); cf = v(CF + 4 * t, 4)
            cin = '0' if t == 0 else acc
            a, b = (wf, cf) if pr < 2 else (cf, wf)
            L.append(f'v_mfma_f32_32x32x16_bf16 {acc}, {a}, {b}, {cin}')
        return L
    def epi(pr):
        L = []
        for nb in range(2):
            for h in range(2):
                o = CV + (nb * 2 + h) * 4
                for i in range(4):
                    r = ACC + (pr % 2) * 32 + nb * 16 + h * 8 + 2 * i
                    L.append(f'v_cvt_pk_bf16_f32 {v(o+i)}, {v(r)}, {v(r+1)}')
                gnb = (pr % 2) * 2 + nb
                off = (gnb * 2 + h) * 1024 if pr < 2 else 16384 + (h * 4 + gnb) * 1024
                L.append(f's_add_u32 s54, s52, {off}')
                L.append(f'buffer_store_dwordx4 {v(o,4)}, v2, s[36:39], s54 offen')
        return L
    NS = 128
    st.stamp()
    p.I(f's_waitcnt vmcnt({vm.n_for(("w",0))})')
    p.I('s_barrier')
    st.stamp()
    for s0 in range(3): emit(reads(s0))
    pend = []
    for sidx in range(NS):
        c, tl = sidx // 16, sidx % 16
        if tl == 0 and c > 0: st.stamp()
        if c < 2 and tl % 4 == 0:
            p.I(f's_waitcnt vmcnt({vm.n_for(("a", (c * 16 + tl) // 4))})')
        p.I(f's_waitcnt lgkmcnt({8 if sidx + 2 < NS else 4 if sidx + 1 < NS else 0})')
        m = mfmas(sidx)
        p.I(m[0])
        nxt = sidx + 3
        if nxt < NS and nxt % 16 == 0:
            cn = nxt // 16
            p.I(f's_waitcnt vmcnt({vm.n_for(("w", cn))})')
            p.I('s_barrier')
            if cn + 3 < 8: pend = dma_chunk(cn + 3) + pend; ptag = ('w', cn + 3)
        rd = reads(nxt) if nxt < NS else []
        emit(rd[:2])
        p.I(m[1])
        emit(rd[2:])
        if c % 2 == 0 and c >= 2 and tl == 2: pend = pend + epi(c // 2 - 1)
        k = 0
        while pend and k < 3:
            x = pend.pop(0)
            p.I(x)
            if x.startswith('buffer_load'): vm.issue(ptag)
            elif x.startswith('buffer_store'): vm.issue('st')
            k += 1
    assert not pend
    st.stamp()
    emit(epi(3), 'st')
    st.stamp()
    if st.on: p.I('s_waitcnt vmcnt(0)')
    st.stamp(); st.real(); st.flush(10, 3)
    kernel_end(p, name)
    return dict(name=name, grid=256, block=512, lds=163840, vgpr=256)
```

```python
import sys, importlib
from common import *
import k0, k1
def main(out, which):
    p = Prog()
    ks = []
    for w in which:
        mod = importlib.import_module(w)
        ks.append(getattr(mod, 'gen_' + w)(p))
    p.fix_hazards()
    for k in ks: p.check_all_waits(k['name'])
    hdr = open('adaLN_cond__compressed_kv_cla__glu_gated_swiglu__prompt.s.ref').read().split('; Override')[0]
    txt = hdr
    for k in ks:
        txt += f"; @launch kernel={k['name']} grid=({k['grid']},1,1) block=({k['block']},1,1) lds={k['lds']}\n"
    txt += '.amdgcn_target "amdgcn-amd-amdhsa--gfx950"\n.text\n'
    txt += p.text()
    txt += '.section .rodata,"a"\n'
    for k in ks: txt += descriptor(k['name'], k['vgpr'])
    open(out, 'w').write(txt)
    n = sum(1 for it in p.items if isinstance(it, Ins))
    na = sum(1 for it in p.items if isinstance(it, Ins) and it.tag == 'auto')
    print('instructions', n, 'auto nops', na)
if __name__ == '__main__':
    main(sys.argv[1], sys.argv[2:])
```
